```python
import torch

def _softmax(x, axis=-1):
    return torch.softmax(x, dim=axis)
def _gelu(x):
    return torch.nn.functional.gelu(x, approximate="tanh")
def _silu(x):
    return torch.nn.functional.silu(x)
def _sigmoid(x):
    return torch.sigmoid(x)
def _layernorm(x, axis=-1, eps=1e-5):
    m = x.mean(dim=axis, keepdim=True)
    v = x.var(dim=axis, keepdim=True, unbiased=False)
    return (x - m) / torch.sqrt(v + eps)
def _scatter_add(tgt, idx, src, axis=0):
    return tgt.clone().index_add_(axis, idx, src)
def _segment_sum(src, seg, n):
    out = torch.zeros((n,) + src.shape[1:], dtype=src.dtype)
    return out.index_add_(0, seg, src)
def _pad(x, pw):
    flat = tuple(v for pair in reversed(pw) for v in pair)
    return torch.nn.functional.pad(x, flat)

kernel_name = 'concat_heads__ssm_conv_s4d__ssm_conv_h3__prompt'

def setup_inputs():

    _w = (lambda a: (lambda t: t.to(torch.bfloat16) if t.is_floating_point() else t)(torch.as_tensor(a)))
    def _A_setup():
        Bsz, L, D, N = 1, 2048, 512, 128
        return {
            "u": _w((lambda *s: torch.randn(*s, dtype=torch.bfloat16) * 0.05)(Bsz, L, D)),
            "log_A_real": _w((lambda *s: torch.randn(*s, dtype=torch.bfloat16) * 3.2)(D, N) * 0.5),
            "A_imag": _w((lambda *s: torch.randn(*s, dtype=torch.bfloat16) * 0.1)(D, N) * 3.14),
            "C_real": _w((lambda *s: torch.randn(*s, dtype=torch.bfloat16) * 0.1)(D, N) / N ** 0.5),
            "C_imag": _w((lambda *s: torch.randn(*s, dtype=torch.bfloat16) * 0.1)(D, N) / N ** 0.5),
            "log_dt": _w((lambda *s: torch.randn(*s, dtype=torch.bfloat16) * 0.05)(D) * 0.5 - 4.0),
            "D_skip": _w((lambda *s: torch.randn(*s, dtype=torch.bfloat16) * 0.05)(D)),
        }
    _A_in = _A_setup()

    def _B_setup():
        B, S, D = 1, 2048, 512
        ks = 4
        return {
            "q": _w((lambda *s: torch.randn(*s, dtype=torch.bfloat16) * 0.05)(B, S, D)),
            "k": _w((lambda *s: torch.randn(*s, dtype=torch.bfloat16) * 0.4)(B, S, D)),
            "v": _w((lambda *s: torch.randn(*s, dtype=torch.bfloat16) * 0.2)(B, S, D)),
            "shift_k": _w((lambda *s: torch.randn(*s, dtype=torch.bfloat16) * 0.4)(D, ks) * 0.5),
            "ssm_k": _w((lambda *s: torch.randn(*s, dtype=torch.bfloat16) * 0.4)(D, S) * (1.0 / S ** 0.5)),
            "ssm_D": _w((lambda *s: torch.randn(*s, dtype=torch.bfloat16) * 0.2)(D)),
        }
    _B_in = _B_setup()

    return {
        "A_u": _A_in["u"],
        "A_log_A_real": _A_in["log_A_real"],
        "A_A_imag": _A_in["A_imag"],
        "A_C_real": _A_in["C_real"],
        "A_C_imag": _A_in["C_imag"],
        "A_log_dt": _A_in["log_dt"],
        "A_D_skip": _A_in["D_skip"],
        "B_q": _B_in["q"],
        "B_k": _B_in["k"],
        "B_v": _B_in["v"],
        "B_shift_k": _B_in["shift_k"],
        "B_ssm_k": _B_in["ssm_k"],
        "B_ssm_D": _B_in["ssm_D"],
    }

def reference(A_u, A_log_A_real, A_A_imag, A_C_real, A_C_imag, A_log_dt, A_D_skip, B_q, B_k, B_v, B_shift_k, B_ssm_k, B_ssm_D):
    def _A_ref(u, log_A_real, A_imag, C_real, C_imag, log_dt, D_skip):
        L = u.shape[1]
        dt = torch.exp(log_dt)
        A = -torch.exp(log_A_real) + 1j * A_imag
        C = (C_real + 1j * C_imag) * dt[:, None]
        pos = (lambda x, dt: x.to(dt))(torch.arange(L), log_dt.dtype)
        P = torch.exp((A * dt[:, None])[:, :, None] * pos[None, None, :])
        K = 2.0 * torch.einsum("dn,dnl->dl", C, P).real
        L2 = 2 * L
        u_t = (lambda x, *d: x.permute(*d))(u, 0, 2, 1)
        Kf = (lambda x, *a, **k: torch.fft.rfft(x.float(), *a, **k))(K, L2)
        Uf = (lambda x, *a, **k: torch.fft.rfft(x.float(), *a, **k))(u_t, L2)
        y = (lambda x, *a, **k: torch.fft.irfft(x, *a, **k).to(torch.bfloat16))(Uf * Kf[None, :, :], L2)[:, :, :L]
        y = (lambda x, *d: x.permute(*d))(y, 0, 2, 1)
        return y + u * D_skip[None, None, :]

    def _B_ref(q, k, v, shift_k, ssm_k, ssm_D):
        B, S, D = q.shape
        ks = shift_k.shape[-1]
        k_pad = _pad(k, ((0, 0), (ks - 1, 0), (0, 0)))
        k_shift = torch.zeros_like(k)
        for t in range(ks):
            k_shift = k_shift + k_pad[:, t:t + S, :] * shift_k[:, ks - 1 - t][None, None, :]
        kv = k_shift * v
        L = 2 * S
        kv_pad = _pad(kv, ((0, 0), (0, S), (0, 0)))
        kf_pad = _pad(ssm_k, ((0, 0), (0, S)))
        kv_f = (lambda x, axes=(-2,-1): torch.fft.rfft2(x.float(), dim=axes))(kv_pad[:, None, :, :], axes=(1, 2))
        kf_f = (lambda x, axes=(-2,-1): torch.fft.rfft2(x.float(), dim=axes))(kf_pad[:, None, :], axes=(1, 2))
        kf_f = (lambda x, *d: x.permute(*d))(kf_f, 1, 2, 0)
        y_f = kv_f * kf_f[None, :, :, :]
        y = (lambda x, s, axes=(-2,-1): torch.fft.irfft2(x, s=s, dim=axes).to(torch.bfloat16))(y_f, (1, L), axes=(1, 2))[:, 0, :S, :]
        y = y + kv * ssm_D[None, None, :]
        return q * y

    a = _A_ref(A_u, A_log_A_real, A_A_imag, A_C_real, A_C_imag, A_log_dt, A_D_skip)
    b = _B_ref(B_q, B_k, B_v, B_shift_k, B_ssm_k, B_ssm_D)
    return torch.concatenate([a, b], axis=-1)
```

```python
NAME="concat_heads__ssm_conv_s4d__ssm_conv_h3__prompt"
out=[]
def E(s): out.append(s)
WS_UT=0; WS_K=4<<20; WS_Z=8<<20
LOG2E="0x3fb8aa3b"; INV2PI="0x3e22f983"
def srd(d, b, nbytes):
    E(f"s_mov_b32 s{d}, s{b}"); E(f"s_mov_b32 s{d+1}, s{b+1}"); E(f"s_mov_b32 s{d+2}, {nbytes}"); E(f"s_mov_b32 s{d+3}, 0x00020000")
def desc(name, vg, sg=102):
    return f""".amdhsa_kernel {name}
  .amdhsa_next_free_vgpr {vg}
  .amdhsa_next_free_sgpr {sg}
  .amdhsa_accum_offset {(vg+3)//4*4}
  .amdhsa_group_segment_fixed_size 0
  .amdhsa_kernarg_size 128
  .amdhsa_user_sgpr_count 2
  .amdhsa_user_sgpr_kernarg_segment_ptr 1
  .amdhsa_system_sgpr_workgroup_id_x 1
.end_amdhsa_kernel"""
def head(name):
    E(f".globl {name}"); E(".p2align 8"); E(f".type {name},@function"); E(f"{name}:")

def k1():
    head("prep_kernel")
    E("s_cmp_ge_u32 s2, 1024"); E("s_cbranch_scc1 P_end")
    E("s_cmp_ge_u32 s2, 512"); E("s_cbranch_scc1 P_tjob")
    E("s_load_dwordx2 s[4:5], s[0:1], 8"); E("s_load_dwordx2 s[6:7], s[0:1], 16"); E("s_load_dwordx2 s[8:9], s[0:1], 24")
    E("s_load_dwordx2 s[10:11], s[0:1], 32"); E("s_load_dwordx2 s[12:13], s[0:1], 40"); E("s_load_dwordx2 s[14:15], s[0:1], 120")
    E("s_waitcnt lgkmcnt(0)")
    srd(16,4,131072); srd(20,6,131072); srd(24,8,131072); srd(28,10,131072); srd(32,12,1024)
    E("s_lshl_b32 s3, s2, 8")
    E("v_and_b32 v1, 127, v0"); E("v_lshlrev_b32 v1, 1, v1"); E("v_add_u32 v1, s3, v1")
    E("s_lshl_b32 s36, s2, 1"); E("v_mov_b32 v2, s36")
    E("buffer_load_ushort v10, v1, s[16:19], 0 offen"); E("buffer_load_ushort v11, v1, s[20:23], 0 offen")
    E("buffer_load_ushort v12, v1, s[24:27], 0 offen"); E("buffer_load_ushort v13, v1, s[28:31], 0 offen")
    E("buffer_load_ushort v14, v2, s[32:35], 0 offen")
    E("s_waitcnt vmcnt(0)")
    for r in (10,11,12,13,14): E(f"v_lshlrev_b32 v{r}, 16, v{r}")
    E(f"v_mul_f32 v14, {LOG2E}, v14"); E(f"v_mul_f32 v10, {LOG2E}, v10"); E("v_exp_f32 v14, v14"); E("v_exp_f32 v10, v10"); E("s_nop 1")
    E("v_cvt_pk_bf16_f32 v15, v14, v10"); E("v_lshlrev_b32 v14, 16, v15"); E("v_and_b32 v10, 0xffff0000, v15")
    E("v_mul_f32 v10, v10, v14")
    E(f"v_mul_f32 v20, 0xbfb8aa3b, v10")
    E("v_mul_f32 v11, v11, v14"); E(f"v_mul_f32 v21, {INV2PI}, v11")
    E("v_mul_f32 v22, v12, v14"); E("v_mul_f32 v22, 2.0, v22"); E("v_mul_f32 v23, v13, v14"); E("v_mul_f32 v23, 2.0, v23")
    E("v_and_b32 v3, 127, v0"); E("v_lshlrev_b32 v3, 4, v3"); E("ds_write_b128 v3, v[20:23]")
    E("s_waitcnt lgkmcnt(0)"); E("s_barrier")
    E("v_lshrrev_b32 v4, 6, v0"); E("s_nop 0"); E("v_readfirstlane_b32 s40, v4")
    E("s_lshl_b32 s41, 1, s40")
    E("s_cmp_eq_u32 s40, 0"); E("s_cselect_b32 s42, 0, 8")
    E("v_and_b32 v5, 15, v0"); E("v_bfe_u32 v6, v0, 4, 2")
    E("v_add_u32 v7, s42, v5"); E("v_lshlrev_b32 v7, 4, v7"); E("v_mul_lo_u32 v7, v7, s41"); E("v_cvt_f32_u32 v7, v7")
    E("v_mul_lo_u32 v8, v5, s41"); E("v_cvt_f32_u32 v8, v8")
    E("v_lshlrev_b32 v9, 4, v6")
    for r in range(40,44): E(f"v_mov_b32 v{r}, 0")
    for m in range(32):
        E(f"ds_read_b128 v[20:23], v9 offset:{m*64}")
        E("s_waitcnt lgkmcnt(0)")
        E("v_mul_f32 v24, v20, v7"); E("v_mul_f32 v25, v21, v7"); E("v_mul_f32 v30, v20, v8"); E("v_mul_f32 v31, v21, v8")
        E("v_exp_f32 v24, v24"); E("v_fract_f32 v25, v25"); E("v_exp_f32 v30, v30"); E("v_fract_f32 v31, v31")
        E("v_cos_f32 v26, v25"); E("v_sin_f32 v27, v25"); E("v_cos_f32 v32, v31"); E("v_sin_f32 v33, v31"); E("s_nop 0")
        E("v_mul_f32 v28, v22, v26"); E("v_mul_f32 v29, v22, v27")
        E("v_fma_f32 v28, -v23, v27, v28"); E("v_fma_f32 v29, v23, v26, v29")
        E("v_mul_f32 v28, v24, v28"); E("v_mul_f32 v29, v24, v29"); E("v_sub_f32 v29, 0, v29")
        E("v_mul_f32 v32, v30, v32"); E("v_mul_f32 v33, v30, v33"); E("s_nop 1")
        E("v_mfma_f32_16x16x4_f32 v[40:43], v28, v32, v[40:43]")
        E("v_mfma_f32_16x16x4_f32 v[40:43], v29, v33, v[40:43]")
    E("s_nop 15")
    for r in range(4):
        E(f"v_lshlrev_b32 v10, 2, v6"); E(f"v_add_u32 v10, {r}, v10"); E("v_add_u32 v10, s42, v10"); E("v_lshlrev_b32 v10, 4, v10")
        E("v_add_u32 v10, v10, v5"); E("v_mul_lo_u32 v10, v10, s41")
        E("v_cmp_ge_u32 vcc, 2048, v10"); E("s_and_saveexec_b64 s[44:45], vcc")
        E("v_lshlrev_b32 v10, 2, v10"); E(f"ds_write_b32 v10, v{40+r} offset:2048")
        E("s_mov_b64 exec, s[44:45]")
    E("s_waitcnt lgkmcnt(0)"); E("s_barrier")
    for e in range(8):
        E(f"v_lshlrev_b32 v10, 3, v0"); E(f"v_add_u32 v10, {e}, v10"); E("v_cvt_f32_u32 v10, v10")
        E("v_bfe_u32 v11, v10, 16, 1"); E("v_add3_u32 v10, v10, v11, s46" ) if False else None
        E("v_add_u32 v10, 0x7fff, v10"); E("v_add_u32 v10, v10, v11"); E("v_and_b32 v10, 0xffff0000, v10")
        E("v_cvt_u32_f32 v10, v10"); E("v_lshlrev_b32 v10, 2, v10"); E(f"ds_read_b32 v{20+e}, v10 offset:2048")
    E("s_waitcnt lgkmcnt(0)")
    for e in range(4): E(f"v_cvt_pk_bf16_f32 v{30+e}, v{20+2*e}, v{21+2*e}")
    E(f"s_add_u32 s14, s14, {WS_K}"); E("s_addc_u32 s15, s15, 0"); srd(48,14,2<<20)
    E("s_lshl_b32 s3, s2, 12"); E("v_lshlrev_b32 v10, 4, v0"); E("v_add_u32 v10, s3, v10")
    E("buffer_store_dwordx4 v[30:33], v10, s[48:51], 0 offen")
    E("s_branch P_end")
    E("P_tjob:")
    E("s_sub_u32 s3, s2, 512"); E("s_lshr_b32 s20, s3, 8"); E("s_and_b32 s21, s3, 255"); E("s_lshr_b32 s22, s21, 3"); E("s_and_b32 s23, s21, 7")
    E("s_lshl_b32 s22, s22, 6"); E("s_lshl_b32 s23, s23, 6")
    E("s_load_dwordx2 s[4:5], s[0:1], 0"); E("s_load_dwordx2 s[6:7], s[0:1], 64"); E("s_load_dwordx2 s[8:9], s[0:1], 72")
    E("s_load_dwordx2 s[10:11], s[0:1], 80"); E("s_load_dwordx2 s[14:15], s[0:1], 120"); E("s_waitcnt lgkmcnt(0)")
    srd(24,4,2<<20); srd(28,6,2<<20); srd(32,8,2<<20); srd(36,10,4096); srd(40,14,4<<20)
    E("v_lshrrev_b32 v1, 2, v0"); E("v_and_b32 v2, 3, v0")
    E("v_add_u32 v3, s22, v1"); E("v_lshlrev_b32 v3, 10, v3"); E("v_lshlrev_b32 v4, 5, v2"); E("v_add_u32 v3, v3, v4")
    E("s_lshl_b32 s44, s23, 1"); E("v_add_u32 v3, s44, v3")
    E("s_cmp_eq_u32 s20, 0"); E("s_cbranch_scc0 P_kv")
    E("buffer_load_dwordx4 v[16:19], v3, s[24:27], 0 offen"); E("buffer_load_dwordx4 v[20:23], v3, s[24:27], 0 offen offset:16")
    E("s_waitcnt vmcnt(0)"); E("s_branch P_tr")
    E("P_kv:")
    for j in range(4):
        E(f"v_subrev_u32 v5, {1024*j}, v3")
        E(f"buffer_load_dwordx4 v[{32+8*j}:{35+8*j}], v5, s[28:31], 0 offen"); E(f"buffer_load_dwordx4 v[{36+8*j}:{39+8*j}], v5, s[28:31], 0 offen offset:16")
    E("buffer_load_dwordx4 v[64:67], v3, s[32:35], 0 offen"); E("buffer_load_dwordx4 v[68:71], v3, s[32:35], 0 offen offset:16")
    E("v_lshlrev_b32 v5, 7, v2"); E("s_lshl_b32 s44, s23, 3"); E("v_add_u32 v5, s44, v5")
    for q in range(8): E(f"buffer_load_dwordx4 v[{72+4*q}:{75+4*q}], v5, s[36:39], 0 offen offset:{16*q}")
    E("s_waitcnt vmcnt(0)")
    for e in range(16):
        dw=e>>1; hi=e&1
        def unp(dst, src):
            if hi: E(f"v_and_b32 v{dst}, 0xffff0000, v{src}")
            else: E(f"v_lshlrev_b32 v{dst}, 16, v{src}")
        E(f"v_lshlrev_b32 v110, 16, v{72+2*e}"); E(f"v_and_b32 v111, 0xffff0000, v{72+2*e}")
        E(f"v_lshlrev_b32 v112, 16, v{73+2*e}"); E(f"v_and_b32 v113, 0xffff0000, v{73+2*e}")
        for j in range(4): unp(104+j, 32+8*j+dw)
        unp(108, 64+dw)
        for j in range(4): E(f"v_mul_f32 v{104+j}, v{104+j}, v{110+j}")
        E("v_cvt_pk_bf16_f32 v114, v104, v105"); E("v_cvt_pk_bf16_f32 v115, v106, v107")
        E("v_lshlrev_b32 v104, 16, v114"); E("v_and_b32 v105, 0xffff0000, v114"); E("v_lshlrev_b32 v106, 16, v115"); E("v_and_b32 v107, 0xffff0000, v115")
        E("v_add_f32 v107, v107, v106"); E("v_cvt_pk_bf16_f32 v114, v107, v107"); E("v_lshlrev_b32 v107, 16, v114")
        E("v_add_f32 v107, v107, v105"); E("v_cvt_pk_bf16_f32 v114, v107, v107"); E("v_lshlrev_b32 v107, 16, v114")
        E("v_add_f32 v107, v107, v104"); E("v_cvt_pk_bf16_f32 v114, v107, v107"); E("v_lshlrev_b32 v107, 16, v114")
        E(f"v_mul_f32 v{116+hi}, v107, v108")
        if hi: E(f"v_cvt_pk_bf16_f32 v{16+dw}, v116, v117")
    E("P_tr:")
    E("v_mul_u32_u24 v5, 2304, v2"); E("v_lshlrev_b32 v6, 1, v1"); E("v_add_u32 v5, v5, v6")
    for e in range(16):
        E(f"ds_write_b16{'_d16_hi' if e&1 else ''} v5, v{16+(e>>1)} offset:{144*e}")
    E("s_waitcnt lgkmcnt(0)"); E("s_barrier")
    E("v_mul_u32_u24 v5, 144, v1"); E("v_lshlrev_b32 v6, 5, v2"); E("v_add_u32 v5, v5, v6")
    E("ds_read_b128 v[16:19], v5"); E("ds_read_b128 v[20:23], v5 offset:16"); E("s_waitcnt lgkmcnt(0)")
    for g in range(2):
        for x in range(4): E(f"v_alignbit_b32 v{24+4*g+x}, v{16+4*g+3-x}, v{16+4*g+3-x}, 16")
    E("s_lshl_b32 s44, s20, 9"); E("s_add_u32 s44, s44, s23"); E("s_lshl_b32 s44, s44, 12"); E("s_lshl_b32 s45, s22, 1"); E("s_add_u32 s44, s44, s45")
    E("v_lshlrev_b32 v5, 12, v1"); E("v_add_u32 v5, s44, v5"); E("v_add_u32 v5, v5, v6")
    E("buffer_store_dwordx4 v[24:27], v5, s[40:43], 0 offen"); E("buffer_store_dwordx4 v[28:31], v5, s[40:43], 0 offen offset:16")
    E("P_end:"); E("s_endpgm")

CS=4256; UOFF=8*CS; WV=UOFF+65*80+16
WV=(WV+15)//16*16
def k2():
    head("conv_kernel")
    E("s_cmp_ge_u32 s2, 256"); E("s_cbranch_scc1 C_end")
    E("s_load_dwordx2 s[4:5], s[0:1], 88"); E("s_load_dwordx2 s[6:7], s[0:1], 120"); E("s_load_dwordx2 s[8:9], s[0:1], 48"); E("s_load_dwordx2 s[10:11], s[0:1], 96")
    E("v_lshrrev_b32 v1, 6, v0"); E("v_and_b32 v2, 63, v0"); E("s_nop 0"); E("v_readfirstlane_b32 s20, v1")
    E("s_lshl_b32 s21, s2, 2"); E("s_add_u32 s21, s21, s20")
    E("s_waitcnt lgkmcnt(0)")
    E("s_cmp_lt_u32 s21, 512"); E("s_cbranch_scc0 C_b")
    E(f"s_add_u32 s4, s6, {WS_K}"); E("s_addc_u32 s5, s7, 0"); E("s_mov_b32 s22, s21"); E("s_branch C_j")
    E("C_b:"); E("s_sub_u32 s22, s21, 512"); E("s_mov_b32 s8, s10"); E("s_mov_b32 s9, s11")
    E("C_j:")
    E("s_lshl_b32 s23, s22, 12"); E("s_add_u32 s4, s4, s23"); E("s_addc_u32 s5, s5, 0"); srd(24,4,4096)
    E("s_lshl_b32 s23, s21, 12"); E("s_add_u32 s12, s6, s23"); E("s_addc_u32 s13, s7, 0"); srd(28,12,4096)
    srd(32,8,1024)
    E("s_mul_i32 s36, s20, %d"%WV)
    E("s_lshl_b32 s37, s22, 1"); E("v_mov_b32 v3, s37"); E("buffer_load_ushort v4, v3, s[32:35], 0 offen")
    for r in range(5):
        E(f"v_add_u32 v3, {64*r-4 & 0xffffffff}, v2"); E("v_lshlrev_b32 v3, 4, v3")
        E(f"buffer_load_dwordx4 v[{16+8*r}:{19+8*r}], v3, s[24:27], 0 offen"); E(f"buffer_load_dwordx4 v[{20+8*r}:{23+8*r}], v3, s[24:27], 0 offen offset:16")
    for r in range(4):
        E(f"v_lshlrev_b32 v3, 4, v2"); E(f"buffer_load_dwordx4 v[{56+4*r}:{59+4*r}], v3, s[28:31], 0 offen offset:{1024*r}")
    E("v_lshrrev_b32 v5, 2, v2"); E("v_mul_u32_u24 v5, 80, v5"); E("v_and_b32 v6, 3, v2"); E("v_lshlrev_b32 v6, 4, v6"); E("v_add_u32 v5, v5, v6")
    E(f"v_add_u32 v5, s36, v5")
    for x in range(4): E(f"v_mov_b32 v{8+x}, 0")
    E("s_waitcnt vmcnt(0)")
    for r in range(4): E(f"ds_write_b128 v5, v[{56+4*r}:{59+4*r}] offset:{UOFF+80+r*16*80}")
    E("v_lshlrev_b32 v6, 4, v2"); E("v_add_u32 v6, s36, v6")
    E("v_cmp_gt_u32 vcc, 5, v2"); E("s_and_saveexec_b64 s[40:41], vcc"); E(f"ds_write_b128 v6, v[8:11] offset:{UOFF}"); E("s_mov_b64 exec, s[40:41]")
    for r in range(5):
        X=16+8*r
        if r==4: E("v_cmp_gt_u32 vcc, 4, v2"); E("s_and_saveexec_b64 s[40:41], vcc")
        for s in range(8):
            if s in (0,4): src=f"v[{X+s//2}:{X+s//2+3}]"
            else:
                for x in range(4):
                    if s&1: E(f"v_alignbit_b32 v{72+x}, v{X+s//2+x+1}, v{X+s//2+x}, 16")
                    else: E(f"v_mov_b32 v{72+x}, v{X+s//2+x}")
                src="v[72:75]"
            E(f"ds_write_b128 v6, {src} offset:{s*CS+r*1024}")
            if s not in (0,4): E("s_nop 1")
        if r==4: E("s_mov_b64 exec, s[40:41]")
    E("v_and_b32 v7, 31, v2"); E("v_add_u32 v7, 1, v7"); E("v_lshrrev_b32 v12, 5, v2")
    E(f"v_and_b32 v13, 7, v7"); E(f"v_mul_u32_u24 v13, {CS}, v13"); E("v_lshrrev_b32 v7, 3, v7"); E("v_sub_u32 v7, v7, v12"); E("v_add_u32 v7, 1, v7")
    E("v_lshlrev_b32 v7, 4, v7"); E("v_add_u32 v7, v7, v13"); E("v_add_u32 v7, s36, v7")
    E(f"v_and_b32 v13, 31, v2"); E("v_mul_u32_u24 v13, 80, v13"); E("v_add_u32 v13, 80, v13")
    E(f"v_lshlrev_b32 v12, 4, v12"); E(f"v_add_u32 v12, {UOFF}, v12"); E("v_add_u32 v12, s36, v12")
    E("v_add_u32 v14, v13, v12")
    for x in range(32): E(f"v_mov_b32 v{96+x}, 0")
    E("s_waitcnt lgkmcnt(0)")
    def reads(t, b):
        base=128+24*b
        E(f"ds_read_b128 v[{base}:{base+3}], v7 offset:{64*t+32}"); E(f"ds_read_b128 v[{base+4}:{base+7}], v7 offset:{64*t}")
        c=32-t
        if c>=0: va="v14"; off=c*80
        else:
            E(f"v_add_u32 v15, {(c*80)&0xffffffff}, v13"); E("v_max_i32 v15, 0, v15"); E("v_add_u32 v15, v15, v12"); va="v15"; off=0
        E(f"ds_read_b128 v[{base+8}:{base+11}], {va} offset:{off}"); E(f"ds_read_b128 v[{base+12}:{base+15}], {va} offset:{off+32}")
        if t<32:
            c=-t
            E(f"v_add_u32 v15, {(c*80)&0xffffffff}, v13"); E("v_max_i32 v15, 0, v15"); E("v_add_u32 v15, v15, v12")
            E(f"ds_read_b128 v[{base+16}:{base+19}], v15"); E(f"ds_read_b128 v[{base+20}:{base+23}], v15 offset:32")
    reads(0,0)
    for t in range(64):
        b=t&1; base=128+24*b
        if t<63: reads(t+1, 1-b)
        n = (6 if t+1<32 else 4) if t<63 else 0
        E(f"s_waitcnt lgkmcnt({n})")
        E(f"v_mfma_f32_32x32x16_bf16 v[112:127], v[{base}:{base+3}], v[{base+8}:{base+11}], v[112:127]")
        E(f"v_mfma_f32_32x32x16_bf16 v[112:127], v[{base+4}:{base+7}], v[{base+12}:{base+15}], v[112:127]")
        if t<32:
            E(f"v_mfma_f32_32x32x16_bf16 v[96:111], v[{base}:{base+3}], v[{base+16}:{base+19}], v[96:111]")
            E(f"v_mfma_f32_32x32x16_bf16 v[96:111], v[{base+4}:{base+7}], v[{base+20}:{base+23}], v[96:111]")
    E("s_nop 15"); E("s_nop 3")
    E("v_lshlrev_b32 v4, 16, v4")
    E(f"s_add_u32 s12, s6, {WS_Z}"); E("s_addc_u32 s13, s7, 0"); E("s_lshl_b32 s23, s21, 12"); E("s_add_u32 s12, s12, s23"); E("s_addc_u32 s13, s13, 0"); srd(28,12,4096)
    E("v_lshrrev_b32 v1, 5, v2"); E("v_and_b32 v3, 31, v2")
    E("v_lshlrev_b32 v5, 6, v3"); E("v_lshlrev_b32 v6, 3, v1"); E("v_add_u32 v5, v5, v6")
    E("v_sub_u32 v6, 1, v1"); E("v_lshlrev_b32 v6, 3, v6"); E("v_add_u32 v6, v6, v13"); E(f"v_add_u32 v6, {UOFF}, v6"); E("v_add_u32 v6, s36, v6")
    for T in range(2):
        acc=96+16*T
        for g in range(4): E(f"ds_read_b64 v[{16+2*g}:{17+2*g}], v6 offset:{T*32*80+16*g}")
        E("s_waitcnt lgkmcnt(0)")
        for g in range(4):
            a=acc+4*g
            E(f"v_and_b32 v30, 0xffff0000, v{17+2*g}"); E(f"v_lshlrev_b32 v31, 16, v{17+2*g}"); E(f"v_and_b32 v32, 0xffff0000, v{16+2*g}"); E(f"v_lshlrev_b32 v33, 16, v{16+2*g}")
            for x in range(4): E(f"v_mul_f32 v{30+x}, v{30+x}, v4")
            E("v_cvt_pk_bf16_f32 v34, v30, v31"); E("v_cvt_pk_bf16_f32 v35, v32, v33")
            E(f"v_cvt_pk_bf16_f32 v36, v{a}, v{a+1}"); E(f"v_cvt_pk_bf16_f32 v37, v{a+2}, v{a+3}")
            E("v_lshlrev_b32 v30, 16, v34"); E("v_and_b32 v31, 0xffff0000, v34"); E("v_lshlrev_b32 v32, 16, v35"); E("v_and_b32 v33, 0xffff0000, v35")
            E("v_lshlrev_b32 v38, 16, v36"); E("v_and_b32 v39, 0xffff0000, v36"); E("v_lshlrev_b32 v40, 16, v37"); E("v_and_b32 v41, 0xffff0000, v37")
            for x in range(4): E(f"v_add_f32 v{30+x}, v{30+x}, v{38+x}")
            E(f"v_cvt_pk_bf16_f32 v{44+2*g}, v30, v31"); E(f"v_cvt_pk_bf16_f32 v{45+2*g}, v32, v33")
        for g in range(4): E(f"buffer_store_dwordx2 v[{44+2*g}:{45+2*g}], v5, s[28:31], 0 offen offset:{T*2048+16*g}")
        E("s_nop 1")
    E("C_end:"); E("s_endpgm")

def k3():
    head("outp_kernel")
    E("s_cmp_ge_u32 s2, 512"); E("s_cbranch_scc1 O_end")
    E("s_lshr_b32 s22, s2, 4"); E("s_and_b32 s23, s2, 15"); E("s_lshl_b32 s22, s22, 6"); E("s_lshl_b32 s23, s23, 6")
    E("s_load_dwordx2 s[4:5], s[0:1], 56"); E("s_load_dwordx2 s[6:7], s[0:1], 104"); E("s_load_dwordx2 s[8:9], s[0:1], 120"); E("s_waitcnt lgkmcnt(0)")
    E(f"s_add_u32 s8, s8, {WS_Z}"); E("s_addc_u32 s9, s9, 0")
    srd(24,4,2<<20); srd(28,6,4<<20); srd(32,8,4<<20)
    E("v_lshrrev_b32 v1, 2, v0"); E("v_and_b32 v2, 3, v0")
    E("v_add_u32 v3, s23, v1"); E("v_lshlrev_b32 v3, 12, v3"); E("v_lshlrev_b32 v4, 5, v2"); E("v_add_u32 v3, v3, v4"); E("s_lshl_b32 s36, s22, 1"); E("v_add_u32 v3, s36, v3")
    E("buffer_load_dwordx4 v[16:19], v3, s[32:35], 0 offen"); E("buffer_load_dwordx4 v[20:23], v3, s[32:35], 0 offen offset:16")
    E("v_add_u32 v5, s22, v1"); E("v_lshlrev_b32 v5, 10, v5"); E("v_add_u32 v5, v5, v4"); E("s_sub_u32 s36, s23, 512"); E("s_lshl_b32 s36, s36, 1"); E("v_add_u32 v5, s36, v5")
    E("buffer_load_dwordx4 v[40:43], v5, s[24:27], 0 offen"); E("buffer_load_dwordx4 v[44:47], v5, s[24:27], 0 offen offset:16")
    E("s_waitcnt vmcnt(0)")
    E("v_mul_u32_u24 v6, 2304, v2"); E("v_lshlrev_b32 v7, 1, v1"); E("v_add_u32 v6, v6, v7")
    for e in range(16): E(f"ds_write_b16{'_d16_hi' if e&1 else ''} v6, v{16+(e>>1)} offset:{144*e}")
    E("s_waitcnt lgkmcnt(0)"); E("s_barrier")
    E("v_mul_u32_u24 v6, 144, v1"); E("v_add_u32 v6, v6, v4")
    E("ds_read_b128 v[16:19], v6"); E("ds_read_b128 v[20:23], v6 offset:16"); E("s_waitcnt lgkmcnt(0)")
    E("s_cmp_lt_u32 s23, 512"); E("s_cbranch_scc1 O_st")
    for x in range(8):
        E(f"v_lshlrev_b32 v30, 16, v{16+x}"); E(f"v_and_b32 v31, 0xffff0000, v{16+x}"); E(f"v_lshlrev_b32 v32, 16, v{40+x}"); E(f"v_and_b32 v33, 0xffff0000, v{40+x}")
        E("v_mul_f32 v30, v30, v32"); E("v_mul_f32 v31, v31, v33"); E(f"v_cvt_pk_bf16_f32 v{16+x}, v30, v31")
    E("O_st:")
    E("v_add_u32 v5, s22, v1"); E("v_lshlrev_b32 v5, 11, v5"); E("v_add_u32 v5, v5, v4"); E("s_lshl_b32 s36, s23, 1"); E("v_add_u32 v5, s36, v5")
    E("buffer_store_dwordx4 v[16:19], v5, s[28:31], 0 offen"); E("buffer_store_dwordx4 v[20:23], v5, s[28:31], 0 offen offset:16")
    E("O_end:"); E("s_endpgm")

hdr=open(f"cdna_kernels/{NAME}.s.ref").read().split("; @launch")[0]
hdr="\n".join(l for l in hdr.splitlines() if l.startswith(";"))
E(hdr)
E("; @launch kernel=prep_kernel grid=(1024,1,1) block=(256,1,1) lds=10496")
E(f"; @launch kernel=conv_kernel grid=(256,1,1) block=(256,1,1) lds={4*WV}")
E("; @launch kernel=outp_kernel grid=(512,1,1) block=(256,1,1) lds=9216")
E('.amdgcn_target "amdgcn-amd-amdhsa--gfx950"'); E(".text")
k1(); k2(); k3()
E('.section .rodata,"a"'); E(".p2align 6")
E(desc("prep_kernel",128)); E(desc("conv_kernel",176)); E(desc("outp_kernel",48))
open(f"cdna_kernels/{NAME}.s","w").write("\n".join(x for x in out if x)+"\n")
print("WV",WV,4*WV)
```
